```python
import torch

def _softmax(x, axis=-1):
    return torch.softmax(x, dim=axis)
def _gelu(x):
    return torch.nn.functional.gelu(x, approximate="tanh")
def _silu(x):
    return torch.nn.functional.silu(x)
def _sigmoid(x):
    return torch.sigmoid(x)
def _layernorm(x, axis=-1, eps=1e-5):
    m = x.mean(dim=axis, keepdim=True)
    v = x.var(dim=axis, keepdim=True, unbiased=False)
    return (x - m) / torch.sqrt(v + eps)
def _scatter_add(tgt, idx, src, axis=0):
    return tgt.clone().index_add_(axis, idx, src)
def _segment_sum(src, seg, n):
    out = torch.zeros((n,) + src.shape[1:], dtype=src.dtype)
    return out.index_add_(0, seg, src)
def _pad(x, pw):
    flat = tuple(v for pair in reversed(pw) for v in pair)
    return torch.nn.functional.pad(x, flat)

kernel_name = 'gated_mix__sliding_local_dilated__mixer_token_mlp__prompt'

def setup_inputs():

    _w = (lambda a: (lambda t: t.to(torch.bfloat16) if t.is_floating_point() else t)(torch.as_tensor(a)))
    def _A_setup():
        B, S, D = 1, 2048, 640
        return {
            "x": _w((lambda *s: torch.randn(*s, dtype=torch.bfloat16) * 0.05)(B, S, D)),
            "wqkv": _w((lambda *s: torch.randn(*s, dtype=torch.bfloat16) * 0.8)(D, 3 * D)),
            "wo": _w((lambda *s: torch.randn(*s, dtype=torch.bfloat16) * 0.05)(D, D)),
        }
    _A_in = _A_setup()

    def _B_setup():
        B, S, D, F = 1, 2048, 640, 1536
        return {
            "x": _w((lambda *s: torch.randn(*s, dtype=torch.bfloat16) * 0.05)(B, S, D)),
            "w1": _w((lambda *s: torch.randn(*s, dtype=torch.bfloat16) * 0.8)(S, F) * (S ** -0.5)),
            "b1": _w((lambda *s: torch.randn(*s, dtype=torch.bfloat16) * 0.8)(F) * 0.02),
            "w2": _w((lambda *s: torch.randn(*s, dtype=torch.bfloat16) * 0.8)(F, S) * (F ** -0.5)),
            "b2": _w((lambda *s: torch.randn(*s, dtype=torch.bfloat16) * 0.8)(S) * 0.02),
        }
    _B_in = _B_setup()

    return {
        "A_x": _A_in["x"],
        "A_wqkv": _A_in["wqkv"],
        "A_wo": _A_in["wo"],
        "B_x": _B_in["x"],
        "B_w1": _B_in["w1"],
        "B_b1": _B_in["b1"],
        "B_w2": _B_in["w2"],
        "B_b2": _B_in["b2"],
        "gate_w": _w((lambda *s: torch.randn(*s, dtype=torch.bfloat16) * 0.05)(640) * 16.0),
    }

def reference(A_x, A_wqkv, A_wo, B_x, B_w1, B_b1, B_w2, B_b2, gate_w):
    def _A_ref(x, wqkv, wo):
        B, S, D = x.shape
        H = 32; Dh = D // H
        W, dil = 8, 2
        qkv = (lambda x, *d: x.permute(*d))((x @ wqkv).reshape(B, S, 3, H, Dh), 2, 0, 3, 1, 4)
        q, k, v = qkv[0], qkv[1], qkv[2]
        scale = Dh ** -0.5
        pos = torch.arange(S)
        off = torch.arange(W) * dil
        idx = pos[:, None] - off[None, :]
        mask = idx >= 0
        idx_c = torch.where(mask, idx, 0).reshape(-1)
        kg = k[:, :, idx_c, :].reshape(B, H, S, W, Dh)
        vg = v[:, :, idx_c, :].reshape(B, H, S, W, Dh)
        logits = torch.einsum("bhsd,bhswd->bhsw", q, kg) * scale
        logits = torch.where(mask[None, None, :, :], logits, -1e9)
        attn = _softmax(logits, axis=-1)
        o = torch.einsum("bhsw,bhswd->bhsd", attn, vg)
        return (lambda x, *d: x.permute(*d))(o, 0, 2, 1, 3).reshape(B, S, D) @ wo

    def _B_ref(x, w1, b1, w2, b2):
        B, S, D = x.shape
        h = _layernorm(x, axis=-1)
        u = torch.einsum("bsd,sf->bdf", h, w1) + b1
        u = _gelu(u)
        y = torch.einsum("bdf,fs->bds", u, w2) + b2
        return (lambda x, *d: x.permute(*d))(y, 0, 2, 1)

    x = A_x
    g = _sigmoid((x * gate_w).sum(-1, keepdims=True))
    a = _A_ref(x, A_wqkv, A_wo)
    b = _B_ref(x, B_w1, B_b1, B_w2, B_b2)
    return g * a + (1 - g) * b
```

```python
import re

TRANS = ("v_exp_f32", "v_log_f32", "v_rcp_f32", "v_rsq_f32", "v_sqrt_f32", "v_sin_f32", "v_cos_f32")

_reg_re = re.compile(r"^-?\|?(v|s|a)(\d+)\|?$")
_rng_re = re.compile(r"^-?\|?(v|s|a)\[(\d+):(\d+)\]\|?$")


def regs_of(tok):
    tok = tok.strip()
    if tok.startswith("abs(") and tok.endswith(")"):
        tok = tok[4:-1]
    m = _reg_re.match(tok)
    if m:
        return {(m.group(1), int(m.group(2)))}
    m = _rng_re.match(tok)
    if m:
        return {(m.group(1), i) for i in range(int(m.group(2)), int(m.group(3)) + 1)}
    if tok == "vcc":
        return {("s", "vcc")}
    if tok == "exec":
        return {("s", "exec")}
    if tok == "m0":
        return {("s", "m0")}
    return set()


class Ins:
    def __init__(self, text):
        self.text = text
        self.label = None
        t = text.split(";")[0].strip()
        self.op = ""
        self.defs = set()
        self.uses = set()
        self.kind = "other"
        self.srcC = set()
        self.srcAB = set()
        self.data = set()
        self.target = None
        self.dpp = False
        self.sdwa = False
        if t.endswith(":"):
            self.label = t[:-1]
            self.kind = "label"
            return
        if not t or t.startswith("."):
            self.kind = "directive"
            return
        parts = t.split(None, 1)
        self.op = op = parts[0]
        rest = parts[1] if len(parts) > 1 else ""
        ops = [o.strip() for o in rest.split(",")] if rest else []
        mods = ""
        if ops:
            last = ops[-1].split(None, 1)
            ops[-1] = last[0]
            mods = last[1] if len(last) > 1 else ""
        clean = []
        for o in ops:
            clean.append(o.split()[0] if o else o)
        ops = clean
        self.mods = rest
        R = regs_of
        if op.startswith("v_mfma"):
            self.kind = "mfma"
            self.defs = R(ops[0])
            self.srcAB = R(ops[1]) | R(ops[2])
            self.srcC = R(ops[3])
            self.uses = self.srcAB | self.srcC
        elif op.startswith("v_"):
            self.kind = "valu"
            self.dpp = ("row_" in rest) or ("quad_perm" in rest) or op.endswith("_dpp")
            self.sdwa = op.endswith("_sdwa") or ("dst_sel" in rest)
            self.defs = R(ops[0])
            srcs = ops[1:]
            if op.startswith(("v_add_co", "v_sub_co", "v_addc_co", "v_subb_co")):
                self.defs |= R(ops[1])
                srcs = ops[2:]
            for o in srcs:
                self.uses |= R(o)
            if op.startswith(("v_fmac", "v_dot2c", "v_pk_fmac", "v_writelane")):
                self.uses |= R(ops[0])
            if op.startswith("v_permlane"):
                self.uses |= R(ops[0])
                self.defs |= R(ops[1])
            if self.dpp:
                self.uses |= R(ops[0])
        elif op.startswith("ds_"):
            self.kind = "ds"
            if op.startswith(("ds_read", "ds_bpermute", "ds_swizzle", "ds_permute")):
                self.defs = R(ops[0])
                for o in ops[1:]:
                    self.uses |= R(o)
            else:
                for o in ops:
                    self.uses |= R(o)
        elif op.startswith("buffer_") or op.startswith("global_"):
            self.kind = "vmem"
            self.lds = bool(re.search(r"\blds\b", rest))
            if op in ("buffer_inv", "buffer_wbl2"):
                pass
            elif op.startswith("buffer_load") and not self.lds:
                self.defs = R(ops[0])
                for o in ops[1:]:
                    self.uses |= R(o)
            elif op.startswith("buffer_load"):
                for o in ops:
                    self.uses |= R(o)
                self.uses |= {("s", "m0")}
            else:
                self.data = R(ops[0])
                for o in ops:
                    self.uses |= R(o)
                if "atomic" in op and "sc0" in rest:
                    self.defs = R(ops[0])
        elif op.startswith("s_"):
            self.kind = "salu"
            if op.startswith("s_cbranch") or op == "s_branch":
                self.kind = "branch"
                self.target = ops[0]
                if "vcc" in op:
                    self.uses |= {("s", "vcc")}
            elif op in ("s_waitcnt", "s_barrier", "s_endpgm", "s_sleep", "s_setprio", "s_nop"):
                pass
            elif op.startswith("s_cmp") or op.startswith("s_bitcmp"):
                for o in ops:
                    self.uses |= R(o)
            else:
                self.defs = R(ops[0])
                for o in ops[1:]:
                    self.uses |= R(o)
                if "saveexec" in op:
                    self.defs |= {("s", "exec")}
                if op.startswith(("s_addk", "s_mulk")):
                    self.uses |= R(ops[0])
        else:
            raise ValueError("unknown instruction: " + text)

    def states(self):
        if self.kind in ("label", "directive"):
            return 0
        if self.op == "s_nop":
            return int(self.text.split()[1].split(";")[0], 0) + 1
        return 1


def vset(s):
    return {r for r in s if r[0] in ("v", "a")}


def sset(s):
    return {r for r in s if r[0] == "s"}


def need(p, c):
    n = 0
    is_dot = lambda i: i.op.startswith("v_dot")
    if p.kind == "valu":
        pv, ps = vset(p.defs), sset(p.defs)
        if c.kind == "mfma" and pv & c.uses:
            n = max(n, 2)
        if c.kind == "valu":
            if c.dpp and pv & c.uses:
                n = max(n, 2)
            if c.op.startswith("v_permlane") and pv & c.uses:
                n = max(n, 2)
            if c.op.startswith(("v_readfirstlane", "v_readlane")) and pv & c.uses:
                n = max(n, 1)
            if ps & c.uses:
                n = max(n, 4 if c.op.startswith(("v_readlane", "v_writelane")) else 2)
            if p.op.startswith(TRANS) and pv & c.uses:
                n = max(n, 1)
            if p.sdwa and pv & (c.uses | c.defs):
                n = max(n, 1)
        if c.kind == "vmem" and ps & c.uses:
            n = max(n, 5)
        if c.kind in ("salu", "branch") and ps & c.uses:
            n = max(n, 5 if c.kind == "branch" else 2)
        if is_dot(p) and pv & (c.uses | c.defs):
            same = c.op.split("_e")[0] == p.op.split("_e")[0]
            if same:
                ops = [o.strip() for o in c.text.split(";")[0].split(None, 1)[1].split(",")]
                ab = regs_of(ops[1].split()[0]) | regs_of(ops[2].split()[0])
                if pv & ab:
                    n = max(n, 3)
            else:
                n = max(n, 3)
    if p.kind == "mfma":
        d = p.defs
        big = "32x32" in p.op
        if c.kind == "mfma":
            if d & c.srcAB:
                n = max(n, 12 if big else 8)
            if d & c.srcC and d != c.srcC:
                n = max(n, 10 if big else 6)
            if d & c.defs and not (d & c.srcC):
                n = max(n, 10 if big else 6)
        elif c.kind in ("valu", "ds", "vmem"):
            if d & (c.uses | c.defs):
                n = max(n, 12 if big else 8)
        if c.kind == "valu" and p.srcC & c.defs:
            n = max(n, 7 if big else 3)
    if p.kind == "salu" and ("s", "m0") in p.defs and c.kind == "vmem" and getattr(c, "lds", False):
        n = max(n, 1)
    if p.kind == "vmem" and p.data and len(p.data) >= 3 and (p.data & c.defs):
        n = max(n, 2)
    return n


class Asm:
    def __init__(self):
        self.lines = []

    def __call__(self, text):
        for l in text.split("\n"):
            l = l.strip()
            if l:
                self.lines.append(l)

    def label(self, name):
        self.lines.append(name + ":")

    def finish(self):
        ins = [Ins(l) for l in self.lines]
        changed = True
        total = 0
        while changed:
            changed = False
            pos = {i.label: k for k, i in enumerate(ins) if i.label}
            jumps = {}
            for k, i in enumerate(ins):
                if i.kind == "branch":
                    jumps.setdefault(pos[i.target], []).append(k)

            def preds(k):
                out = []
                if k > 0 and ins[k - 1].op not in ("s_branch", "s_endpgm"):
                    out.append(k - 1)
                out += jumps.get(k, [])
                return out

            for k, c in enumerate(ins):
                if c.kind in ("label", "directive") or c.op in ("s_nop", "s_waitcnt", "s_barrier"):
                    continue
                worst = 0
                stack = [(p, 0) for p in preds(k)]
                seen = {}
                while stack:
                    j, dist = stack.pop()
                    if seen.get(j, 99) <= dist:
                        continue
                    seen[j] = dist
                    p = ins[j]
                    if p.kind not in ("label", "directive"):
                        worst = max(worst, need(p, c) - dist)
                    nd = dist + p.states()
                    if nd < 12:
                        stack += [(q, nd) for q in preds(j)]
                if worst > 0:
                    ins.insert(k, Ins("s_nop %d" % (worst - 1)))
                    total += 1
                    changed = True
                    break
        self.nops = total
        out = []
        for i in ins:
            out.append(i.text if i.kind == "label" else "    " + i.text)
        return "\n".join(out) + "\n"
```

```python
import sys, os
sys.path.insert(0, os.path.dirname(os.path.abspath(__file__)))
from asmlib import Asm

NAME = "gated_mix__sliding_local_dilated__mixer_token_mlp__prompt"

HF, UF, OF, GT, OFLAG, UFLAG, STAMP = 0, 0x300000, 0x500000, 0x780000, 0x790000, 0x7A0000, 0x800000
WS_SIZE = 0x900000
SL = 36864
LNBUF = 4 * SL
LNP = 1344
LDS_BYTES = LNBUF + 8 * LNP
TP = 264

sX, sWQ, sWO, sW1, sW2, sWS, sDBG, sOUT, sB1, sB2, sGW = [8 + 4 * i for i in range(11)]
(sWAVE, sXCD, sJ, sRB, sHP, sDT64, sFT64, sACT, sST64, sDT80, sSBLK, sSLOT, sI, s1K,
 sT0, sT1, sT2, sT3, sOA, sOB, sOC, sOD, sL0, sL1, sL2, sL3, sL4) = range(52, 79)
sM0, sM1 = 80, 82
sTM = 84


def srd(s):
    return "s[%d:%d]" % (s, s + 3)


def vr(b, n):
    return "v%d" % b if n == 1 else "v[%d:%d]" % (b, b + n - 1)


class Lds:
    def __init__(self, a):
        self.a = a
        self.q = []
        self.done = 0

    def op(self, text, regs):
        self.a(text)
        self.q.append(set(regs))

    def need(self, regs):
        regs = set(regs)
        last = -1
        for k, r in enumerate(self.q):
            if r & regs:
                last = k
        if last < self.done:
            return
        n = min(len(self.q) - 1 - last, 15)
        self.a("s_waitcnt lgkmcnt(%d)" % n)
        self.done = len(self.q) - n


def rng(b, n):
    return range(b, b + n)


class Gen:
    def __init__(self, a=6, dh=2, du=2, stamps=False, mimic=True):
        self.A = a
        self.DH = dh
        self.DU = du
        self.stamps = stamps
        self.mimic = mimic
        self.a = Asm()
        self.nst = 0

    def stamp(self, idx):
        if not self.stamps:
            return
        a = self.a
        a("s_memtime s[%d:%d]" % (sTM, sTM + 1))
        a("s_waitcnt lgkmcnt(0)")
        a("v_mov_b32 v254, s%d" % sTM)
        a("buffer_store_dword v254, v255, %s, 0 offen offset:%d" % (srd(sWS), idx * 4))

    def advance_slot(self):
        a = self.a
        a("s_add_u32 s%d, s%d, %d" % (sSLOT, sSLOT, SL))
        a("s_cmp_eq_u32 s%d, %d" % (sSLOT, 4 * SL))
        a("s_cselect_b32 s%d, 0, s%d" % (sSLOT, sSLOT))

    def bf16_round(self, dst, src):
        a = self.a
        a("v_cvt_pk_bf16_f32 v%d, v%d, v%d" % (dst, src, src))
        a("v_and_b32 v%d, 0xffff0000, v%d" % (dst, dst))

    def prologue(self):
        a = self.a
        a("s_cmp_ge_u32 s2, 256")
        a("s_cbranch_scc1 L_end")
        for s, off in ((sX, 0), (sWQ, 8), (sWS, 88), (sGW, 64), (sWO, 16), (sW1, 32), (sB1, 40), (sW2, 48),
                       (sB2, 56), (sOUT, 72), (sDBG, 80)):
            a("s_load_dwordx2 s[%d:%d], s[0:1], %d" % (s, s + 1, off))
        a("v_lshrrev_b32 v1, 6, v0")
        a("v_and_b32 v0, 63, v0")
        a("v_readfirstlane_b32 s%d, v1" % sWAVE)
        for s, n in ((sX, 2621440), (sWQ, 2457600), (sWO, 819200), (sW1, 6291456), (sW2, 6291456),
                     (sWS, WS_SIZE), (sDBG, 256), (sOUT, 2621440), (sB1, 3072), (sB2, 4096), (sGW, 1280)):
            a("s_mov_b32 s%d, %d" % (s + 2, n))
            a("s_mov_b32 s%d, 0x20000" % (s + 3))
        a("s_and_b32 s%d, s2, 7" % sXCD)
        a("s_lshr_b32 s%d, s2, 3" % sJ)
        a("s_lshr_b32 s%d, s%d, 1" % (sT0, sXCD))
        a("s_and_b32 s%d, s%d, 1" % (sT1, sXCD))
        a("s_lshr_b32 s%d, s%d, 3" % (sT2, sJ))
        a("s_lshl2_add_u32 s%d, s%d, s%d" % (sRB, sT0, sT2))
        a("s_and_b32 s%d, s%d, 7" % (sT2, sJ))
        a("s_lshl3_add_u32 s%d, s%d, s%d" % (sHP, sT1, sT2))
        a("s_mul_i32 s%d, s%d, 205" % (sT2, sJ))
        a("s_lshr_b32 s%d, s%d, 10" % (sT2, sT2))
        a("s_mul_i32 s%d, s%d, 6" % (sFT64, sT0))
        a("s_add_u32 s%d, s%d, s%d" % (sFT64, sFT64, sT2))
        a("s_mul_i32 s%d, s%d, 5" % (sT2, sT2))
        a("s_sub_u32 s%d, s%d, s%d" % (sT2, sJ, sT2))
        a("s_mul_i32 s%d, s%d, 5" % (sDT64, sT1))
        a("s_add_u32 s%d, s%d, s%d" % (sDT64, sDT64, sT2))
        a("s_cmp_lt_u32 s%d, 30" % sJ)
        a("s_cselect_b32 s%d, 1, 0" % sACT)
        a("s_lshr_b32 s%d, s%d, 2" % (sT2, sJ))
        a("s_lshl3_add_u32 s%d, s%d, s%d" % (sST64, sT0, sT2))
        a("s_and_b32 s%d, s%d, 3" % (sT2, sJ))
        a("s_lshl2_add_u32 s%d, s%d, s%d" % (sDT80, sT1, sT2))
        a("s_lshl_b32 s%d, s%d, 5" % (sSBLK, sXCD))
        a("s_add_u32 s%d, s%d, s%d" % (sSBLK, sSBLK, sJ))
        a("s_movk_i32 s%d, 1024" % s1K)
        a("s_mov_b32 s%d, %d" % (sSLOT, SL))
        if self.stamps:
            a("s_lshl_b32 s%d, s2, 3" % sT2)
            a("s_add_u32 s%d, s%d, s%d" % (sT2, sT2, sWAVE))
            a("s_lshl_b32 s%d, s%d, 8" % (sT2, sT2))
            a("s_add_u32 s%d, s%d, %d" % (sT2, sT2, STAMP))
            a("v_mov_b32 v255, s%d" % sT2)
        a("s_cmp_ge_u32 s%d, 4" % sWAVE)
        a("s_cbranch_scc1 L_loader")

    def loader(self):
        a = self.a
        vXo, vWq, vW1, vH, vW2, vU, vU2, vWo, vO = 8, 13, 17, 21, 22, 26, 27, 28, 33
        t0, t1, t2, t3, t4 = 40, 41, 42, 43, 44
        lw = sWAVE
        a.label("L_loader")
        a("s_sub_u32 s%d, s%d, 4" % (lw, sWAVE))
        a("s_setprio 1")
        a("s_mul_i32 s%d, s%d, 36" % (sT0, lw))
        a("s_lshl_b32 s%d, s%d, 7" % (sT1, sRB))
        a("s_sub_u32 s%d, s%d, 16" % (sT1, sT1))
        a("v_lshrrev_b32 v%d, 3, v0" % t0)
        a("v_add_u32 v%d, s%d, v%d" % (t0, sT0, t0))
        a("v_and_b32 v%d, 7, v0" % t1)
        for i in range(5):
            a("v_add_u32 v%d, %d, v%d" % (t2, 8 * i, t0))
            a("v_bfe_u32 v%d, v%d, 1, 3" % (t3, t2))
            a("v_xor_b32 v%d, v%d, v%d" % (t3, t3, t1))
            a("v_add_u32 v%d, s%d, v%d" % (t2, sT1, t2))
            a("v_max_i32 v%d, 0, v%d" % (t2, t2))
            a("v_mul_u32_u24 v%d, 1280, v%d" % (t2, t2))
            a("v_lshl_add_u32 v%d, v%d, 4, v%d" % (vXo + i, t3, t2))
        a("v_lshrrev_b32 v%d, 4, v0" % t0)
        a("v_and_b32 v%d, 15, v0" % t1)
        a("s_mul_i32 s%d, s%d, 80" % (sT0, sHP))
        a("s_add_u32 s%d, s%d, 1280" % (sT0, sT0))
        a("s_mul_i32 s%d, s%d, %d" % (sT1, lw, 16 * 3840))
        a("s_add_u32 s%d, s%d, s%d" % (sT0, sT0, sT1))
        a("v_mul_u32_u24 v%d, 3840, v%d" % (t4, t0))
        a("v_add_u32 v%d, s%d, v%d" % (t4, sT0, t4))
        for par in range(2):
            a("v_lshlrev_b32 v%d, 1, v%d" % (t2, t0))
            if par:
                a("v_or_b32 v%d, 8, v%d" % (t2, t2))
            a("v_xor_b32 v%d, v%d, v%d" % (t2, t2, t1))
            a("v_min_u32 v%d, 14, v%d" % (t2, t2))
            a("v_lshl_add_u32 v%d, v%d, 4, v%d" % (t3, t2, t4))
            a("v_add_u32 v%d, 1200, v%d" % (vWq + par + 2, t3))
            a("v_cmp_le_u32 vcc, 5, v%d" % t2)
            a("v_cndmask_b32 v%d, v%d, v%d, vcc" % (t3, t3, vWq + par + 2))
            a("v_subrev_u32 v%d, 2640, v%d" % (vWq + par + 2, t3))
            a("v_cmp_le_u32 vcc, 10, v%d" % t2)
            a("v_cndmask_b32 v%d, v%d, v%d, vcc" % (t3, t3, vWq + par + 2))
            for j in (par, par + 2):
                sw = ((j & 1) << 1) | (j >> 1)
                a("v_add_u32 v%d, %d, v%d" % (vWq + j, 4 * sw * 3840 - 1024 * j, t3))
        a("s_mul_i32 s%d, s%d, 4608" % (sL0, lw))
        a("s_lshl_b32 s%d, s%d, 12" % (sL2, lw))
        a("s_add_u32 s%d, s%d, 18432" % (sL1, sL2))
        a("s_mov_b32 s%d, 0" % sOA)
        a("s_mov_b32 s%d, 0" % sOB)
        a("s_waitcnt lgkmcnt(0)")
        self.stamp(0)

        def m0(slot, off_s, const=0):
            if slot is None:
                a("s_add_u32 m0, s%d, s%d" % (sSLOT, off_s))
                if const:
                    a("s_add_u32 m0, m0, %d" % const)
            else:
                a("s_add_u32 m0, s%d, %d" % (off_s, slot + const))

        def dma(v, s, so, imm=0, sc1=False):
            a("buffer_load_dwordx4 v%d, %s, s%d offen%s%s lds" % (
                v, srd(s), so, " offset:%d" % imm if imm else "", " sc1" if sc1 else ""))

        def part_qkv(slot):
            m0(slot, sL0)
            for i in range(4):
                dma(vXo + i, sX, sOA)
                a("s_add_u32 m0, m0, s%d" % s1K)
            a("s_mov_b32 exec_hi, 0")
            dma(vXo + 4, sX, sOA)
            a("s_mov_b32 exec_hi, -1")
            m0(slot, sL1)
            a("s_add_u32 s%d, s%d, 128" % (sOA, sOA))
            for j in range(4):
                dma(vWq + j, sWQ, sOB, 1024 * j)
            a("s_add_u32 s%d, s%d, %d" % (sOB, sOB, 64 * 3840))

        def part_w(slot, v, s, step):
            m0(slot, sL2)
            for j in range(4):
                dma(v + j, s, sOC, 1024 * j)
            a("s_add_u32 s%d, s%d, %d" % (sOC, sOC, step))

        def part_frag4(slot, v, base):
            m0(slot, sL2, base)
            for j in range(4):
                dma(v, sWS, sOD, 1024 * j, True)
            a("s_add_u32 s%d, s%d, 16384" % (sOD, sOD))

        def part_u(slot):
            m0(slot, sL3, 16384)
            for j in range(4):
                dma(vU, sWS, sOD, 1024 * j, True)
            a("s_add_u32 m0, m0, 4096")
            dma(vU2, sWS, sOD, 0, True)
            a("s_add_u32 s%d, s%d, 20480" % (sOD, sOD))

        def part_wo(slot):
            m0(slot, sL3)
            for j in range(4):
                dma(vWo + j, sWO, sOC, 1024 * j)
            a("s_add_u32 m0, m0, 4096")
            dma(vWo + 4, sWO, sOC, 0)
            a("s_add_u32 s%d, s%d, %d" % (sOC, sOC, 128 * 1280))

        emit = {
            "Q": (part_qkv, 9),
            "W1": (lambda s: part_w(s, vW1, sW1, 128 * 3072), 4),
            "H": (lambda s: part_frag4(s, vH, 16384), 4),
            "W2": (lambda s: part_w(s, vW2, sW2, 128 * 4096), 4),
            "U": (part_u, 5),
            "WO": (part_wo, 5),
            "O": (lambda s: part_frag4(s, vO, 20480), 4),
        }
        A = self.A
        stages = (["Q"] * A + ["G1"] * 16 + ["Q"] * (10 - A) + ["ATT"] + ["G2"] * 12 + ["OWO"] * 5)
        parts_of = {"Q": ["Q"], "G1": ["W1", "H"], "ATT": [], "G2": ["W2", "U"], "OWO": ["WO", "O"]}
        N = len(stages)
        issue = {b: [] for b in range(-1, N)}
        for n, st in enumerate(stages):
            for p in parts_of[st]:
                b = max(n - 3, -1)
                if p == "H":
                    b = max(b, A - 3 + self.DH)
                if p == "U":
                    b = max(b, 27 - 3 + self.DU)
                issue[b].append((n, p))
        for b in issue:
            issue[b].sort(key=lambda x: x[0])
        seq = []
        waits = {}
        for b in range(-1, N):
            if b >= 0:
                last = max([k for k, (n, p) in enumerate(seq) if n == b], default=None)
                waits[b] = None if last is None else len(seq) - 1 - last
            for (n, p) in issue[b]:
                seq += [(n, p)] * emit[p][1]
        self.sched = (stages, issue, waits)

        for (n, p) in issue[-1]:
            emit[p][0](((n + 1) & 3) * SL)
        a("v_lshrrev_b32 v%d, 4, v0" % t0)
        a("v_lshlrev_b32 v%d, 1, v%d" % (t0, t0))
        a("v_and_b32 v%d, 7, v0" % t1)
        a("v_xor_b32 v%d, v%d, v%d" % (t0, t0, t1))
        a("v_lshlrev_b32 v%d, 4, v%d" % (t0, t0))
        a("v_lshrrev_b32 v%d, 5, v0" % t1)
        a("v_bfe_u32 v%d, v0, 3, 2" % t2)
        a("v_lshl_add_u32 v%d, v%d, 3, v%d" % (t1, t1, t2))
        a("v_mul_u32_u24 v%d, 3072, v%d" % (t1, t1))
        a("s_mul_i32 s%d, s%d, %d" % (sT0, lw, 32 * 3072))
        a("s_lshl_b32 s%d, s%d, 7" % (sT1, sFT64))
        a("s_add_u32 s%d, s%d, s%d" % (sT0, sT0, sT1))
        a("v_add3_u32 v%d, v%d, v%d, s%d" % (t1, t1, t0, sT0))
        for j in range(4):
            a("v_add_u32 v%d, %d, v%d" % (vW1 + j, (16 * (j >> 1) + 4 * (j & 1)) * 3072 - 1024 * j, t1))
        a("v_lshrrev_b32 v%d, 3, v0" % t1)
        a("v_lshlrev_b32 v%d, 12, v%d" % (t1, t1))
        a("s_lshl_b32 s%d, s%d, 17" % (sT0, lw))
        a("s_lshl_b32 s%d, s%d, 7" % (sT1, sST64))
        a("s_add_u32 s%d, s%d, s%d" % (sT0, sT0, sT1))
        a("v_add3_u32 v%d, v%d, v%d, s%d" % (t1, t1, t0, sT0))
        for j in range(4):
            a("v_add_u32 v%d, %d, v%d" % (vW2 + j, 8 * j * 4096 - 1024 * j, t1))
        a("v_lshlrev_b32 v%d, 4, v0" % t0)
        a("s_lshl_b32 s%d, s%d, 18" % (sT0, sDT64))
        a("s_add_u32 s%d, s%d, s%d" % (sT0, sT0, sL2))
        if HF:
            a("s_add_u32 s%d, s%d, %d" % (sT0, sT0, HF))
        a("v_add_u32 v%d, s%d, v%d" % (vH, sT0, t0))
        a("s_mul_i32 s%d, s%d, 5120" % (sL3, lw))
        a("s_mul_i32 s%d, s%d, 245760" % (sT0, sDT80))
        a("s_add_u32 s%d, s%d, s%d" % (sT0, sT0, sL3))
        a("s_add_u32 s%d, s%d, %d" % (sT0, sT0, UF))
        a("v_add_u32 v%d, s%d, v%d" % (vU, sT0, t0))
        a("v_add_u32 v%d, 4096, v%d" % (vU2, vU))
        a("s_mul_i32 s%d, s%d, 81920" % (sT0, sST64))
        a("s_add_u32 s%d, s%d, s%d" % (sT0, sT0, sL2))
        a("s_add_u32 s%d, s%d, %d" % (sT0, sT0, OF))
        a("v_add_u32 v%d, s%d, v%d" % (vO, sT0, t0))
        a("s_mul_i32 s%d, s%d, %d" % (sT0, lw, 32 * 1280))
        a("s_mul_i32 s%d, s%d, 160" % (sT1, sDT80))
        a("s_add_u32 s%d, s%d, s%d" % (sT0, sT0, sT1))
        for j in range(5):
            a("v_add_u32 v%d, %d, v0" % (t0, 64 * j))
            a("v_mul_u32_u24 v%d, 205, v%d" % (t1, t0))
            a("v_lshrrev_b32 v%d, 11, v%d" % (t1, t1))
            a("v_mul_u32_u24 v%d, 10, v%d" % (t2, t1))
            a("v_sub_u32 v%d, v%d, v%d" % (t0, t0, t2))
            a("v_and_b32 v%d, 19, v%d" % (t2, t1))
            a("v_bfe_u32 v%d, v%d, 2, 1" % (t3, t1))
            a("v_lshl_or_b32 v%d, v%d, 3, v%d" % (t2, t3, t2))
            a("v_bfe_u32 v%d, v%d, 3, 1" % (t3, t1))
            a("v_lshl_or_b32 v%d, v%d, 2, v%d" % (t2, t3, t2))
            a("v_mul_u32_u24 v%d, 1280, v%d" % (t2, t2))
            a("v_lshl_add_u32 v%d, v%d, 4, v%d" % (t2, t0, t2))
            a("v_add_u32 v%d, s%d, v%d" % (t2, sT0, t2))
            if 0 < j < 4:
                a("v_subrev_u32 v%d, %d, v%d" % (vWo + j, 1024 * j, t2))
            else:
                a("v_mov_b32 v%d, v%d" % (vWo + j, t2))
        a("s_barrier")

        def sig(b):
            return (waits[b], tuple((n - b, p) for (n, p) in issue[b]))

        first_of = {}
        for b in range(-1, N):
            for (n, p) in issue[b]:
                first_of.setdefault(p, b)
        g1_lo, g1_hi = A - 3, A + 16 + 2
        b = 0
        nloop = 0
        while b < N:
            e = b
            steady = all(n - b == 3 for (n, p) in issue[b]) and issue[b]
            while (steady and e + 1 < N and sig(e + 1) == sig(b)
                   and not any(first_of[p] == e + 1 for p in first_of)
                   and (g1_lo <= e + 1 <= g1_hi) == (g1_lo <= b <= g1_hi)):
                e += 1
            cnt = e - b + 1
            for p, so in (("W1", sOC), ("W2", sOC), ("WO", sOC), ("H", sOD), ("U", sOD), ("O", sOD)):
                if first_of[p] == b:
                    a("s_mov_b32 s%d, 0" % so)
            loop = cnt >= 3
            reps = [None] if loop else list(range(b, e + 1))
            if loop:
                nloop += 1
                a("s_mov_b32 s%d, %d" % (sSLOT, ((b + 3 + 1) & 3) * SL))
                a("s_mov_b32 s%d, %d" % (sI, cnt))
                a.label("L_ld%d" % nloop)
            for bb in reps:
                cur = b if bb is None else bb
                near_g1 = g1_lo <= cur <= g1_hi
                if waits[cur] is not None:
                    a("s_waitcnt vmcnt(%d)" % waits[cur])
                    if near_g1 and waits[cur] > 0:
                        self.nst += 1
                        a("s_cmp_eq_u32 s%d, 1" % sACT)
                        a("s_cbranch_scc1 L_w%d" % self.nst)
                        a("s_waitcnt vmcnt(0)")
                        a.label("L_w%d" % self.nst)
                a("s_barrier")
                for (n, p) in issue[cur]:
                    skip = p in ("W1", "H")
                    if skip:
                        self.nst += 1
                        lab = "L_s%d" % self.nst
                        a("s_cmp_eq_u32 s%d, 0" % sACT)
                        a("s_cbranch_scc1 %s" % lab)
                    emit[p][0](None if loop else ((n + 1) & 3) * SL)
                    if skip:
                        a.label(lab)
            if loop:
                self.advance_slot()
                a("s_sub_u32 s%d, s%d, 1" % (sI, sI))
                a("s_cmp_lg_u32 s%d, 0" % sI)
                a("s_cbranch_scc1 L_ld%d" % nloop)
            b = e + 1
        a("s_endpgm")

    def compute(self):
        a = self.a
        A = self.A
        w = sWAVE
        vI16, vG = 1, 2
        vQx, vQw, vG1a, vG1b, vG2b, vG2a, vOa, vOb = 3, 5, 7, 9, 10, 11, 12, 13
        vC = 14
        vPoll, vFlagO, vFlagU, vB1, vB2, vGate, vZero, vOne = 18, 19, 20, 22, 26, 27, 28, 29
        accQ, acc1, accB, accA = 32, 104, 120, 140
        F = 160
        t = [F + i for i in range(90)]

        a("v_and_b32 v%d, 15, v0" % vI16)
        a("v_lshrrev_b32 v%d, 4, v0" % vG)
        xr, gr = F, F + 10
        vo = F + 20
        a("v_lshrrev_b32 v%d, 5, v0" % vo)
        a("s_lshl_b32 s%d, s%d, 3" % (sT0, sSBLK))
        a("s_lshl1_add_u32 s%d, s%d, s%d" % (sT0, w, sT0))
        a("v_add_u32 v%d, s%d, v%d" % (vo + 2, sT0, vo))
        a("v_mul_u32_u24 v%d, 1280, v%d" % (vo, vo + 2))
        a("v_and_b32 v%d, 31, v0" % (vo + 1))
        a("v_lshlrev_b32 v%d, 3, v%d" % (vo + 1, vo + 1))
        a("v_add_u32 v%d, v%d, v%d" % (vo, vo, vo + 1))
        a("s_waitcnt lgkmcnt(0)")
        self.stamp(0)
        for i in range(5):
            a("buffer_load_dwordx2 %s, v%d, %s, 0 offen offset:%d" % (vr(xr + 2 * i, 2), vo, srd(sX), 256 * i))
        for i in range(5):
            a("buffer_load_dwordx2 %s, v%d, %s, 0 offen offset:%d" % (vr(gr + 2 * i, 2), vo + 1, srd(sGW), 256 * i))
        a("v_mov_b32 v%d, 0" % vZero)
        a("v_mov_b32 v%d, 0" % vPoll)
        a("v_mov_b32 v%d, 1" % vOne)
        a("s_lshl_b32 s%d, s%d, 4" % (sT0, sRB))
        a("s_add_u32 s%d, s%d, s%d" % (sT0, sT0, sHP))
        a("s_lshl2_add_u32 s%d, s%d, s%d" % (sT0, sT0, w))
        a("s_lshl_b32 s%d, s%d, 2" % (sT0, sT0))
        a("s_add_u32 s%d, s%d, %d" % (sT0, sT0, OFLAG))
        a("v_mov_b32 v%d, s%d" % (vFlagO, sT0))
        a("s_mul_i32 s%d, s%d, 24" % (sT0, sDT64))
        a("s_add_u32 s%d, s%d, s%d" % (sT0, sT0, sFT64))
        a("s_lshl2_add_u32 s%d, s%d, s%d" % (sT0, sT0, w))
        a("s_lshl_b32 s%d, s%d, 2" % (sT0, sT0))
        a("s_add_u32 s%d, s%d, %d" % (sT0, sT0, UFLAG))
        a("s_cmp_eq_u32 s%d, 1" % sACT)
        a("s_cselect_b32 s%d, s%d, %d" % (sT0, sT0, WS_SIZE))
        a("v_mov_b32 v%d, s%d" % (vFlagU, sT0))
        a("s_mov_b64 exec, 1")
        a("buffer_store_dword v%d, v%d, %s, 0 offen sc1" % (vZero, vFlagO, srd(sWS)))
        a("buffer_store_dword v%d, v%d, %s, 0 offen sc1" % (vZero, vFlagU, srd(sWS)))
        a("s_mov_b64 exec, -1")
        p0, p1, p2, p3 = F + 30, F + 31, F + 32, F + 33
        a("v_lshrrev_b32 v%d, 1, v%d" % (p0, vI16))
        a("v_xor_b32 v%d, v%d, v%d" % (p0, p0, vG))
        a("v_lshlrev_b32 v%d, 4, v%d" % (p0, p0))
        a("v_lshl_add_u32 v%d, v%d, 7, v%d" % (vQx, vI16, p0))
        a("v_xor_b32 v%d, 64, v%d" % (vQx + 1, vQx))
        a("v_lshrrev_b32 v%d, 2, v%d" % (p0, vI16))
        a("v_and_b32 v%d, 1, v%d" % (p1, vG))
        a("v_lshl_add_u32 v%d, v%d, 2, v%d" % (p0, p1, p0))
        a("v_lshrrev_b32 v%d, 1, v%d" % (p1, vG))
        a("v_lshl_add_u32 v%d, v%d, 4, v%d" % (p1, p1, p0))
        a("v_and_b32 v%d, 3, v%d" % (p2, vI16))
        a("v_lshlrev_b32 v%d, 3, v%d" % (p2, p2))
        a("s_lshl_b32 s%d, s%d, 1" % (sT0, w))
        a("v_xor_b32 v%d, s%d, v%d" % (p3, sT0, p0))
        a("v_lshl_add_u32 v%d, v%d, 5, v%d" % (p3, p3, p2))
        a("v_lshl_add_u32 v%d, v%d, 8, v%d" % (p3, p1, p3))
        a("v_add_u32 v%d, 18432, v%d" % (vQw, p3))
        a("v_xor_b32 v%d, 32, v%d" % (vQw + 1, vQw))
        a("v_lshrrev_b32 v%d, 1, v%d" % (p0, p0))
        a("s_and_b32 s%d, s%d, 1" % (sT0, w))
        a("s_lshl_b32 s%d, s%d, 1" % (sT0, sT0))
        a("v_xor_b32 v%d, s%d, v%d" % (p3, sT0, p0))
        a("v_lshl_add_u32 v%d, v%d, 5, v%d" % (p3, p3, p2))
        a("v_lshl_add_u32 v%d, v%d, 7, v%d" % (vG1a, p1, p3))
        a("v_xor_b32 v%d, 32, v%d" % (vG1a + 1, vG1a))
        a("v_mul_u32_u24 v%d, 160, v%d" % (p3, p1))
        a("v_add_u32 v%d, v%d, v%d" % (vOa, p3, p2))
        a("v_xor_b32 v%d, s%d, v%d" % (p3, w, p0))
        a("v_lshl_add_u32 v%d, v%d, 5, v%d" % (p3, p3, p2))
        a("v_lshrrev_b32 v%d, 2, v0" % p1)
        a("v_lshl_add_u32 v%d, v%d, 7, v%d" % (vG2b, p1, p3))
        a("v_lshlrev_b32 v%d, 4, v0" % p0)
        a("s_lshr_b32 s%d, s%d, 1" % (sT0, w))
        a("s_lshl_b32 s%d, s%d, 11" % (sT0, sT0))
        a("s_add_u32 s%d, s%d, 16384" % (sT0, sT0))
        a("v_add_u32 v%d, s%d, v%d" % (vG1b, sT0, p0))
        a("v_add_u32 v%d, 16384, v%d" % (vG2a, p0))
        a("s_lshl_b32 s%d, s%d, 10" % (sT0, w))
        a("s_add_u32 s%d, s%d, 20480" % (sT0, sT0))
        a("v_add_u32 v%d, s%d, v%d" % (vOb, sT0, p0))
        for r in rng(accQ, 128):
            a("v_mov_b32 v%d, 0" % r)
        a("s_and_b32 s%d, s%d, 1" % (sT0, w))
        a("s_lshl1_add_u32 s%d, s%d, s%d" % (sT0, sFT64, sT0))
        a("s_lshl_b32 s%d, s%d, 6" % (sT0, sT0))
        a("v_lshl_add_u32 v%d, v%d, 3, s%d" % (p0, vG, sT0))
        a("buffer_load_dwordx2 %s, v%d, %s, 0 offen" % (vr(vB1, 2), p0, srd(sB1)))
        a("buffer_load_dwordx2 %s, v%d, %s, 0 offen offset:32" % (vr(vB1 + 2, 2), p0, srd(sB1)))

        xs = F + 40
        sm, gs, tq, tq2 = F + 34, F + 35, F + 36, F + 37
        a("s_waitcnt vmcnt(9)")
        for i in range(10):
            a("v_lshlrev_b32 v%d, 16, v%d" % (xs + 2 * i, xr + i))
            a("v_and_b32 v%d, 0xffff0000, v%d" % (xs + 2 * i + 1, xr + i))
        a("v_add_f32 v%d, v%d, v%d" % (sm, xs, xs + 1))
        a("v_add_f32 v%d, v%d, v%d" % (tq, xs + 2, xs + 3))
        for i in range(2, 10):
            d = sm if i % 2 == 0 else tq
            a("v_add_f32 v%d, v%d, v%d" % (d, d, xs + 2 * i))
            a("v_add_f32 v%d, v%d, v%d" % (d, d, xs + 2 * i + 1))
        a("v_add_f32 v%d, v%d, v%d" % (sm, sm, tq))
        a("v_mov_b32 v%d, 0" % gs)
        a("s_waitcnt vmcnt(4)")
        for i in range(10):
            a("v_dot2c_f32_bf16 v%d, v%d, v%d" % (gs, xr + i, gr + i))

        def red32(regs):
            for sh in (8, 4, 2, 1):
                for r in regs:
                    a("v_add_f32_dpp v%d, v%d, v%d row_ror:%d row_mask:0xf bank_mask:0xf" % (r, r, r, sh))
            for k, r in enumerate(regs):
                a("v_mov_b32 v%d, v%d" % (tq + k, r))
            for k, r in enumerate(regs):
                a("v_permlane16_swap_b32 v%d, v%d" % (r, tq + k))
            for k, r in enumerate(regs):
                a("v_add_f32 v%d, v%d, v%d" % (r, r, tq + k))

        red32([sm, gs])
        a("v_mul_f32 v%d, 0x3acccccd, v%d" % (sm, sm))
        for i in range(20):
            a("v_sub_f32 v%d, v%d, v%d" % (xs + i, xs + i, sm))
        a("v_mul_f32 v%d, v%d, v%d" % (sm, xs, xs))
        a("v_mul_f32 v%d, v%d, v%d" % (tq, xs + 1, xs + 1))
        for i in range(2, 20):
            a("v_fmac_f32 v%d, v%d, v%d" % (sm if i % 2 == 0 else tq, xs + i, xs + i))
        a("v_add_f32 v%d, v%d, v%d" % (sm, sm, tq))
        red32([sm])
        a("v_mul_f32 v%d, 0x3acccccd, v%d" % (sm, sm))
        if self.mimic:
            self.bf16_round(sm, sm)
        a("v_add_f32 v%d, 0x3727c5ac, v%d" % (sm, sm))
        if self.mimic:
            self.bf16_round(sm, sm)
        a("v_sqrt_f32 v%d, v%d" % (sm, sm))
        if self.mimic:
            self.bf16_round(sm, sm)
            self.bf16_round(gs, gs)
        a("v_rcp_f32 v%d, v%d" % (sm, sm))
        a("v_mul_f32 v%d, 0xbfb8aa3b, v%d" % (gs, gs))
        a("v_exp_f32 v%d, v%d" % (gs, gs))
        for i in range(20):
            a("v_mul_f32 v%d, v%d, v%d" % (xs + i, xs + i, sm))
        a("v_add_f32 v%d, 1.0, v%d" % (gs, gs))
        a("v_rcp_f32 v%d, v%d" % (gs, gs))
        for i in range(10):
            a("v_cvt_pk_bf16_f32 v%d, v%d, v%d" % (xr + i, xs + 2 * i, xs + 2 * i + 1))
        a("v_lshrrev_b32 v%d, 5, v0" % tq)
        a("s_lshl_b32 s%d, s%d, 1" % (sT0, w))
        a("v_add_u32 v%d, s%d, v%d" % (tq, sT0, tq))
        a("v_mul_u32_u24 v%d, %d, v%d" % (tq, LNP, tq))
        a("s_mov_b32 s%d, %d" % (sT0, LNBUF))
        a("v_add3_u32 v%d, v%d, v%d, s%d" % (tq, tq, vo + 1, sT0))
        for i in range(5):
            a("ds_write_b64 v%d, %s offset:%d" % (tq, vr(xr + 2 * i, 2), 256 * i))
        if self.mimic:
            self.bf16_round(gs, gs)
        a("v_lshlrev_b32 v%d, 2, v%d" % (vo + 2, vo + 2))
        a("s_mov_b32 s%d, %d" % (sT1, GT))
        a("s_mov_b32 exec_lo, 1")
        a("s_mov_b32 exec_hi, 1")
        a("buffer_store_dword v%d, v%d, %s, s%d offen sc1" % (gs, vo + 2, srd(sWS), sT1))
        a("s_mov_b64 exec, -1")
        a("v_lshrrev_b32 v%d, 2, v%d" % (p0, vI16))
        a("v_mul_u32_u24 v%d, %d, v%d" % (p0, LNP, p0))
        a("v_lshl_add_u32 v%d, v%d, 5, v%d" % (p0, vG, p0))
        a("s_lshl_b32 s%d, s%d, 7" % (sT0, w))
        a("s_add_u32 s%d, s%d, %d" % (sT0, sT0, LNBUF))
        a("v_add3_u32 v%d, v%d, v%d, s%d" % (p0, p0, p2, sT0))
        a("v_lshlrev_b32 v%d, 4, v%d" % (p1, vI16))
        a("v_lshl_add_u32 v%d, v%d, 10, v%d" % (p1, vG, p1))
        a("s_lshr_b32 s%d, s%d, 2" % (sT0, sSBLK))
        a("s_lshl_b32 s%d, s%d, 12" % (sT0, sT0))
        a("s_and_b32 s%d, s%d, 3" % (sT1, sSBLK))
        a("s_lshl_b32 s%d, s%d, 8" % (sT1, sT1))
        a("s_add_u32 s%d, s%d, s%d" % (sT0, sT0, sT1))
        a("s_lshl_b32 s%d, s%d, 18" % (sT1, w))
        a("s_add_u32 s%d, s%d, s%d" % (sT0, sT0, sT1))
        if HF:
            a("s_add_u32 s%d, s%d, %d" % (sT0, sT0, HF))
        a("s_add_u32 s%d, s%d, %d" % (sT1, sT0, 4 << 18))
        a("s_add_u32 s%d, s%d, %d" % (sT2, sT0, 8 << 18))
        a("s_waitcnt lgkmcnt(0)")
        a("s_barrier")
        hb = F + 40
        for it in range(3):
            if it == 2:
                a("s_cmp_ge_u32 s%d, 2" % w)
                a("s_cbranch_scc1 L_ln_done")
            a("ds_read_b64_tr_b16 %s, v%d offset:%d" % (vr(hb + 4 * it, 2), p0, 512 * it))
            a("ds_read_b64_tr_b16 %s, v%d offset:%d" % (vr(hb + 4 * it + 2, 2), p0, 512 * it + 4 * LNP))
            a("s_waitcnt lgkmcnt(0)")
            a("buffer_store_dwordx4 %s, v%d, %s, s%d offen sc1" % (vr(hb + 4 * it, 4), p1, srd(sWS), sT0 + it))
        a.label("L_ln_done")
        self.stamp(1)

        def signal(vflag):
            a("s_waitcnt vmcnt(0)")
            a("s_mov_b64 exec, 1")
            a("buffer_store_dword v%d, v%d, %s, 0 offen sc1" % (vOne, vflag, srd(sWS)))
            a("s_mov_b64 exec, -1")

        def at(n, name, body, wave0=False):
            a("s_cmp_lg_u32 s%d, %d" % (sI, n))
            a("s_cbranch_scc1 %s" % name)
            if wave0:
                a("s_cmp_lg_u32 s%d, 0" % w)
                a("s_cbranch_scc1 %s" % name)
            body()
            a.label(name)

        pv = F + 88

        def poll_issue(kind):
            if kind == "h":
                a("v_lshlrev_b32 v%d, 2, v0" % vPoll)
                a("buffer_load_dword v%d, v%d, %s, 0 offen sc1" % (pv, vPoll, srd(sDBG)))
            elif kind == "u":
                a("s_mul_i32 s%d, s%d, 80" % (sT0, sDT80))
                a("s_lshr_b32 s%d, s%d, 6" % (sT0, sT0))
                a("s_mul_i32 s%d, s%d, 384" % (sT0, sT0))
                a("s_add_u32 s%d, s%d, %d" % (sT0, sT0, UFLAG))
                a("v_min_u32 v%d, 47, v0" % vPoll)
                a("v_lshl_add_u32 v%d, v%d, 4, s%d" % (vPoll, vPoll, sT0))
                a("buffer_load_dwordx4 %s, v%d, %s, 0 offen sc1" % (vr(pv, 4), vPoll, srd(sWS)))
            else:
                a("s_lshr_b32 s%d, s%d, 1" % (sT0, sST64))
                a("s_lshl_b32 s%d, s%d, 8" % (sT0, sT0))
                a("s_add_u32 s%d, s%d, %d" % (sT0, sT0, OFLAG))
                a("v_lshl_add_u32 v%d, v0, 2, s%d" % (vPoll, sT0))
                a("buffer_load_dword v%d, v%d, %s, 0 offen sc1" % (pv, vPoll, srd(sWS)))

        def poll_check(kind):
            lab = "L_poll_" + kind
            a("s_mov_b32 s%d, 0x40000" % sT1)
            a.label(lab)
            a("s_waitcnt vmcnt(0)")
            if kind == "u":
                a("v_and_b32 v%d, v%d, v%d" % (pv, pv, pv + 1))
                a("v_and_b32 v%d, v%d, v%d" % (pv + 2, pv + 2, pv + 3))
                a("v_and_b32 v%d, v%d, v%d" % (pv, pv, pv + 2))
            a("v_cmp_eq_u32 vcc, %s, v%d" % ("0x01010101" if kind == "h" else "1", pv))
            a("s_cmp_eq_u64 vcc, -1")
            a("s_cbranch_scc1 %s_ok" % lab)
            a("s_sub_u32 s%d, s%d, 1" % (sT1, sT1))
            a("s_cbranch_scc1 %s_ok" % lab)
            a("s_sleep 2")
            if kind == "h":
                a("buffer_load_dword v%d, v%d, %s, 0 offen sc1" % (pv, vPoll, srd(sDBG)))
            elif kind == "u":
                a("buffer_load_dwordx4 %s, v%d, %s, 0 offen sc1" % (vr(pv, 4), vPoll, srd(sWS)))
            else:
                a("buffer_load_dword v%d, v%d, %s, 0 offen sc1" % (pv, vPoll, srd(sWS)))
            a("s_branch %s" % lab)
            a.label(lab + "_ok")

        def sig_h():
            a("v_mov_b32 v%d, s2" % vPoll)
            a("s_mov_b64 exec, 1")
            a("buffer_store_byte v%d, v%d, %s, 0 offen sc1" % (vOne, vPoll, srd(sDBG)))
            a("s_mov_b64 exec, -1")

        hpoll = A - 3 + self.DH - 1
        upoll = 24 + self.DU - 1 - 16
        assert 2 <= hpoll < A and A < upoll <= 9, (hpoll, upoll)

        a("s_mov_b32 s%d, 0" % sI)
        a.label("L_qkv")
        a("s_cmp_eq_u32 s%d, %d" % (sI, A))
        a("s_cbranch_scc1 L_g1")
        a.label("L_qkv_go")
        a("s_barrier")
        for k, src in enumerate((vQx, vQx + 1, vQw, vQw + 1)):
            a("v_add_u32 v%d, s%d, v%d" % (vC + k, sSLOT, src))
        at(1, "L_h_sig", sig_h, True)
        at(hpoll, "L_h_pi", lambda: poll_issue("h"), True)
        at(upoll, "L_u_pi", lambda: poll_issue("u"), True)
        L = Lds(a)
        fa = [F, F + 44]
        fb = [F + 8, F + 52]

        def q_reads(kk):
            out = []
            for tt in range(2):
                for h in range(2):
                    r = fa[kk] + 4 * tt + 2 * h
                    out.append(("ds_read_b64_tr_b16 %s, v%d offset:%d" % (vr(r, 2), vC + 2 + tt, kk * 8192 + h * 2048), rng(r, 2)))
            for j in range(9):
                r = fb[kk] + 4 * j
                out.append(("ds_read_b128 %s, v%d offset:%d" % (vr(r, 4), vC + kk, j * 2048), rng(r, 4)))
            return out

        for x in q_reads(0):
            L.op(*x)
        pend = q_reads(1)
        for kk in range(2):
            for j in range(9):
                L.need(list(rng(fa[kk], 8)) + list(rng(fb[kk] + 4 * j, 4)))
                for tt in range(2):
                    c = accQ + 4 * (9 * tt + j)
                    a("v_mfma_f32_16x16x32_bf16 %s, %s, %s, %s" % (vr(c, 4), vr(fa[kk] + 4 * tt, 4), vr(fb[kk] + 4 * j, 4), vr(c, 4)))
                    if pend and (tt == 0 or j < 4):
                        L.op(*pend.pop(0))
        at(0, "L_h_drain", lambda: a("s_waitcnt vmcnt(0)"))
        at(A, "L_u_sig", lambda: signal(vFlagU))
        at(hpoll, "L_h_pc", lambda: poll_check("h"), True)
        at(upoll, "L_u_pc", lambda: poll_check("u"), True)
        self.advance_slot()
        a("s_add_u32 s%d, s%d, 1" % (sI, sI))
        a("s_cmp_lt_u32 s%d, 10" % sI)
        a("s_cbranch_scc1 L_qkv")
        self.stamp(4)

        TB = 3 * SL
        p0, p1 = F, F + 1
        a("v_mul_u32_u24 v%d, %d, v%d" % (p0, TP, vI16))
        a("v_lshl_add_u32 v%d, v%d, 3, v%d" % (p0, vG, p0))
        a("s_lshl_b32 s%d, s%d, 6" % (sT0, w))
        a("s_add_u32 s%d, s%d, %d" % (sT0, sT0, TB))
        a("v_add_u32 v%d, s%d, v%d" % (p0, sT0, p0))
        for j in range(9):
            for tt in range(2):
                c = accQ + 4 * (9 * tt + j)
                a("v_cvt_pk_bf16_f32 v%d, v%d, v%d" % (c, c, c + 1))
                a("v_cvt_pk_bf16_f32 v%d, v%d, v%d" % (c + 1, c + 2, c + 3))
                a("ds_write_b64 v%d, %s offset:%d" % (p0, vr(c, 2), j * 16 * TP + tt * 32))
        a("s_lshr_b32 s%d, s%d, 1" % (sT0, w))
        a("s_lshl_b32 s%d, s%d, 6" % (sT0, sT0))
        a("v_add_u32 v%d, s%d, v0" % (p1, sT0))
        a("s_and_b32 s%d, s%d, 1" % (sT1, w))
        a("s_mul_i32 s%d, s%d, 40" % (sT2, sT1))
        a("s_add_u32 s%d, s%d, %d" % (sT2, sT2, TB + 2 * TP))
        a("v_mul_u32_u24 v%d, %d, v%d" % (p0, TP, p1))
        a("v_add_u32 v%d, s%d, v%d" % (p0, sT2, p0))
        a("s_lshl_b32 s%d, s%d, 7" % (sT2, sRB))
        a("v_add_u32 v%d, s%d, v%d" % (p1, sT2, p1))
        q, kb, vb, lg, ov = F + 2, accQ, F + 12, F + 84, accQ
        kreg = lambda j: (accQ + 10 * j) if j < 7 else (F + 72)
        vreg = lambda j: F + 12 + 10 * (j % 6)
        lg = F + 82
        for j in range(8):
            a("v_mov_b32 v%d, 0" % (lg + j))
        a("s_waitcnt lgkmcnt(0)")
        a("s_barrier")
        self.advance_slot()
        L = Lds(a)

        def rd(base, off):
            return [("ds_read_b64 %s, v%d offset:%d" % (vr(base + 2 * e, 2), p0, off + 8 * e), rng(base + 2 * e, 2)) for e in range(5)]

        pend = rd(q, 14 * TP + 160)
        for j in range(8):
            pend += rd(kreg(j), (14 - 2 * j) * TP)
        for j in range(6):
            pend += rd(vreg(j), (14 - 2 * j) * TP + 80)
        for _ in range(15):
            L.op(*pend.pop(0))
        for jp in range(4):
            j0, j1 = 2 * jp, 2 * jp + 1
            L.need(list(rng(q, 10)) + list(rng(kreg(j0), 10)) + list(rng(kreg(j1), 10)))
            for e in range(10):
                a("v_dot2c_f32_bf16 v%d, v%d, v%d" % (lg + j0, q + e, kreg(j0) + e))
                a("v_dot2c_f32_bf16 v%d, v%d, v%d" % (lg + j1, q + e, kreg(j1) + e))
                L.op(*pend.pop(0))
        while pend:
            L.op(*pend.pop(0))
        mx, sm2, big = F + 2, F + 3, F + 4
        if self.mimic:
            for j in range(0, 8, 2):
                a("v_cvt_pk_bf16_f32 v%d, v%d, v%d" % (mx, lg + j, lg + j + 1))
                a("v_lshlrev_b32 v%d, 16, v%d" % (lg + j, mx))
                a("v_and_b32 v%d, 0xffff0000, v%d" % (lg + j + 1, mx))
        for j in range(8):
            a("v_mul_f32 v%d, 0x3e64f92e, v%d" % (lg + j, lg + j))
        if self.mimic:
            for j in range(0, 8, 2):
                a("v_cvt_pk_bf16_f32 v%d, v%d, v%d" % (mx, lg + j, lg + j + 1))
                a("v_lshlrev_b32 v%d, 16, v%d" % (lg + j, mx))
                a("v_and_b32 v%d, 0xffff0000, v%d" % (lg + j + 1, mx))
        a("v_mov_b32 v%d, 0xce6e6b28" % big)
        for j in range(1, 8):
            a("v_cmp_le_u32 vcc, %d, v%d" % (2 * j, p1))
            a("v_cndmask_b32 v%d, v%d, v%d, vcc" % (lg + j, big, lg + j))
        a("v_max3_f32 v%d, v%d, v%d, v%d" % (mx, lg, lg + 1, lg + 2))
        a("v_max3_f32 v%d, v%d, v%d, v%d" % (mx, mx, lg + 3, lg + 4))
        a("v_max3_f32 v%d, v%d, v%d, v%d" % (mx, mx, lg + 5, lg + 6))
        a("v_max_f32 v%d, v%d, v%d" % (mx, mx, lg + 7))
        for j in range(8):
            a("v_sub_f32 v%d, v%d, v%d" % (lg + j, lg + j, mx))
        for j in range(8):
            a("v_mul_f32 v%d, 0x3fb8aa3b, v%d" % (lg + j, lg + j))
        for j in range(8):
            a("v_exp_f32 v%d, v%d" % (lg + j, lg + j))
        a("v_add_f32 v%d, v%d, v%d" % (sm2, lg, lg + 1))
        a("v_add_f32 v%d, v%d, v%d" % (mx, lg + 2, lg + 3))
        a("v_add_f32 v%d, v%d, v%d" % (sm2, sm2, lg + 4))
        a("v_add_f32 v%d, v%d, v%d" % (mx, mx, lg + 5))
        a("v_add_f32 v%d, v%d, v%d" % (sm2, sm2, lg + 6))
        a("v_add_f32 v%d, v%d, v%d" % (mx, mx, lg + 7))
        a("v_add_f32 v%d, v%d, v%d" % (sm2, sm2, mx))
        a("v_rcp_f32 v%d, v%d" % (sm2, sm2))
        for j in range(8):
            a("v_mul_f32 v%d, v%d, v%d" % (lg + j, lg + j, sm2))
        plo, phi = accQ + 40, accQ + 48
        for j in range(8):
            a("v_cvt_pk_bf16_f32 v%d, v%d, v%d" % (plo + j, lg + j, vZero))
            a("v_cvt_pk_bf16_f32 v%d, v%d, v%d" % (phi + j, vZero, lg + j))
        ov = accQ
        for e in range(20):
            a("v_mov_b32 v%d, 0" % (ov + e))
        for j in range(8):
            L.need(rng(vreg(j), 10))
            for e in range(10):
                a("v_dot2c_f32_bf16 v%d, v%d, v%d" % (ov + 2 * e, vreg(j) + e, plo + j))
                a("v_dot2c_f32_bf16 v%d, v%d, v%d" % (ov + 2 * e + 1, vreg(j) + e, phi + j))
            if j < 2:
                for x in rd(vreg(j + 6), (14 - 2 * (j + 6)) * TP + 80):
                    L.op(*x)
        op = accQ + 24
        for e in range(10):
            a("v_cvt_pk_bf16_f32 v%d, v%d, v%d" % (op + e, ov + 2 * e, ov + 2 * e + 1))
        a("v_and_b32 v%d, 15, v%d" % (p0, p1))
        a("v_lshlrev_b32 v%d, 4, v%d" % (p0, p0))
        a("v_bfe_u32 v%d, v%d, 4, 2" % (mx, p1))
        a("v_lshl_add_u32 v%d, v%d, 10, v%d" % (p0, mx, p0))
        a("s_lshr_b32 s%d, s%d, 1" % (sT0, w))
        a("s_lshl1_add_u32 s%d, s%d, s%d" % (sT0, sRB, sT0))
        a("s_mul_i32 s%d, s%d, 81920" % (sT0, sT0))
        a("s_add_u32 s%d, s%d, %d" % (sT0, sT0, OF))
        a("v_add_u32 v%d, s%d, v%d" % (p0, sT0, p0))

        def unit_off(dst, u):
            a("s_mul_i32 s%d, s%d, 5" % (dst, sHP))
            a("s_add_u32 s%d, s%d, %d" % (dst, dst, u))
            a("s_and_b32 s%d, s%d, 3" % (sT3, dst))
            a("s_lshr_b32 s%d, s%d, 2" % (dst, dst))
            a("s_lshl_b32 s%d, s%d, 12" % (dst, dst))
            a("s_lshl_b32 s%d, s%d, 8" % (sT3, sT3))
            a("s_add_u32 s%d, s%d, s%d" % (dst, dst, sT3))

        unit_off(sT2, 2)
        a("s_bitcmp1_b32 s%d, 0" % w)
        a("s_cbranch_scc1 L_o_h1")
        unit_off(sT0, 0)
        unit_off(sT1, 1)
        a("buffer_store_dwordx4 %s, v%d, %s, s%d offen sc1" % (vr(op, 4), p0, srd(sWS), sT0))
        a("buffer_store_dwordx4 %s, v%d, %s, s%d offen sc1" % (vr(op + 4, 4), p0, srd(sWS), sT1))
        a("buffer_store_dwordx2 %s, v%d, %s, s%d offen sc1" % (vr(op + 8, 2), p0, srd(sWS), sT2))
        a("s_branch L_o_done")
        a.label("L_o_h1")
        unit_off(sT0, 3)
        unit_off(sT1, 4)
        a("buffer_store_dwordx2 %s, v%d, %s, s%d offen offset:8 sc1" % (vr(op, 2), p0, srd(sWS), sT2))
        a("buffer_store_dwordx4 %s, v%d, %s, s%d offen sc1" % (vr(op + 2, 4), p0, srd(sWS), sT0))
        a("buffer_store_dwordx4 %s, v%d, %s, s%d offen sc1" % (vr(op + 6, 4), p0, srd(sWS), sT1))
        a.label("L_o_done")
        vS = vB1
        a("s_lshl_b32 s%d, s%d, 2" % (sT0, sST64))
        a("s_add_u32 s%d, s%d, s%d" % (sT0, sT0, w))
        a("s_lshl_b32 s%d, s%d, 4" % (sT0, sT0))
        a("v_add_u32 v%d, s%d, v%d" % (vS, sT0, vI16))
        a("v_lshlrev_b32 v%d, 1, v%d" % (vS + 1, vS))
        a("v_lshlrev_b32 v%d, 2, v%d" % (vS + 2, vS))
        a("s_mov_b32 s%d, %d" % (sT1, GT))
        a("buffer_load_ushort v%d, v%d, %s, 0 offen" % (vB2, vS + 1, srd(sB2)))
        a("buffer_load_dword v%d, v%d, %s, s%d offen sc1" % (vGate, vS + 2, srd(sWS), sT1))
        self.stamp(5)

        a("s_mov_b32 s%d, 0" % sI)
        a.label("L_g2")
        a("s_barrier")
        a("v_add_u32 v%d, s%d, v%d" % (vC, sSLOT, vG2a))
        a("v_add_u32 v%d, s%d, v%d" % (vC + 1, sSLOT, vG2b))
        at(8, "L_o_pi", lambda: poll_issue("o"), True)
        L = Lds(a)
        fr = lambda kk: F + 24 * (kk % 3)

        def g2_reads(kk):
            out = []
            for h in range(2):
                r = fr(kk) + 2 * h
                out.append(("ds_read_b64_tr_b16 %s, v%d offset:%d" % (vr(r, 2), vC + 1, kk * 4096 + h * 2048), rng(r, 2)))
            for tt in range(5):
                r = fr(kk) + 4 + 4 * tt
                out.append(("ds_read_b128 %s, v%d offset:%d" % (vr(r, 4), vC, kk * 5120 + tt * 1024), rng(r, 4)))
            return out

        for x in g2_reads(0) + g2_reads(1):
            L.op(*x)
        for kk in range(4):
            pend = g2_reads(kk + 2) if kk < 2 else []
            for tt in range(5):
                L.need(list(rng(fr(kk), 4)) + list(rng(fr(kk) + 4 + 4 * tt, 4)))
                c = accB + 4 * tt
                a("v_mfma_f32_16x16x32_bf16 %s, %s, %s, %s" % (vr(c, 4), vr(fr(kk) + 4 + 4 * tt, 4), vr(fr(kk), 4), vr(c, 4)))
                if kk == 0 or tt > 0:
                    for _ in range(2):
                        if pend:
                            L.op(*pend.pop(0))
            assert not pend
        at(0, "L_o_sig", lambda: signal(vFlagO))
        at(8, "L_o_pc", lambda: poll_check("o"), True)
        self.advance_slot()
        a("s_add_u32 s%d, s%d, 1" % (sI, sI))
        a("s_cmp_lt_u32 s%d, 12" % sI)
        a("s_cbranch_scc1 L_g2")
        self.stamp(6)

        a("s_mov_b32 s%d, 0" % sI)
        a.label("L_owo")
        a("s_barrier")
        a("v_add_u32 v%d, s%d, v%d" % (vC, sSLOT, vOa))
        a("v_add_u32 v%d, s%d, v%d" % (vC + 1, sSLOT, vOb))
        L = Lds(a)

        def o_reads(kk):
            r = fr(kk)
            out = [("ds_read_b128 %s, v%d offset:%d" % (vr(r, 4), vC + 1, kk * 4096), rng(r, 4))]
            for tt in range(5):
                for h in range(2):
                    r = fr(kk) + 4 + 4 * tt + 2 * h
                    out.append(("ds_read_b64_tr_b16 %s, v%d offset:%d" % (vr(r, 2), vC, kk * 5120 + h * 1280 + tt * 32), rng(r, 2)))
            return out

        for x in o_reads(0):
            L.op(*x)
        for kk in range(4):
            pend = o_reads(kk + 1) if kk < 3 else []
            for tt in range(5):
                L.need(list(rng(fr(kk), 4)) + list(rng(fr(kk) + 4 + 4 * tt, 4)))
                c = accA + 4 * tt
                a("v_mfma_f32_16x16x32_bf16 %s, %s, %s, %s" % (vr(c, 4), vr(fr(kk) + 4 + 4 * tt, 4), vr(fr(kk), 4), vr(c, 4)))
                for _ in range(3 if tt == 0 else 2):
                    if pend:
                        L.op(*pend.pop(0))
            assert not pend
        self.advance_slot()
        a("s_add_u32 s%d, s%d, 1" % (sI, sI))
        a("s_cmp_lt_u32 s%d, 5" % sI)
        a("s_cbranch_scc1 L_owo")
        self.stamp(7)

        g1m, po, e0 = F, F + 1, F + 2
        a("s_waitcnt vmcnt(0)")
        a("v_lshlrev_b32 v%d, 16, v%d" % (vB2, vB2))
        a("v_sub_f32 v%d, 1.0, v%d" % (g1m, vGate))
        if self.mimic:
            self.bf16_round(g1m, g1m)
        a("v_mul_u32_u24 v%d, 1280, v%d" % (po, vS))
        a("v_lshl_add_u32 v%d, v%d, 3, v%d" % (po, vG, po))
        a("s_mul_i32 s%d, s%d, 160" % (sT0, sDT80))

        def round2(r0, r1):
            a("v_cvt_pk_bf16_f32 v%d, v%d, v%d" % (r1, r0, r1))
            a("v_lshlrev_b32 v%d, 16, v%d" % (r0, r1))
            a("v_and_b32 v%d, 0xffff0000, v%d" % (r1, r1))

        for tt in range(5):
            ca, cb = accA + 4 * tt, accB + 4 * tt
            if self.mimic:
                for r in (0, 2):
                    round2(cb + r, cb + r + 1)
                    round2(ca + r, ca + r + 1)
            for r in range(4):
                a("v_add_f32 v%d, v%d, v%d" % (cb + r, cb + r, vB2))
            for r in range(4):
                a("v_mul_f32 v%d, v%d, v%d" % (ca + r, ca + r, vGate))
            if self.mimic:
                for r in (0, 2):
                    round2(cb + r, cb + r + 1)
                    round2(ca + r, ca + r + 1)
                for r in range(4):
                    a("v_mul_f32 v%d, v%d, v%d" % (cb + r, cb + r, g1m))
                for r in (0, 2):
                    round2(cb + r, cb + r + 1)
                for r in range(4):
                    a("v_add_f32 v%d, v%d, v%d" % (ca + r, ca + r, cb + r))
            else:
                for r in range(4):
                    a("v_fmac_f32 v%d, v%d, v%d" % (ca + r, cb + r, g1m))
            a("v_cvt_pk_bf16_f32 v%d, v%d, v%d" % (e0 + 2 * tt, ca, ca + 1))
            a("v_cvt_pk_bf16_f32 v%d, v%d, v%d" % (e0 + 2 * tt + 1, ca + 2, ca + 3))
            a("buffer_store_dwordx2 %s, v%d, %s, s%d offen offset:%d" % (vr(e0 + 2 * tt, 2), po, srd(sOUT), sT0, 32 * tt))
        self.stamp(8)
        a("s_endpgm")

        a.label("L_g1")
        self.stamp(2)
        a("s_mov_b32 s%d, 0" % sT3)
        a("s_cmp_eq_u32 s%d, 0" % sACT)
        a("s_cbranch_scc1 L_g1_idle")
        a.label("L_g1_loop")
        a("s_barrier")
        for k, src in enumerate((vG1a, vG1a + 1, vG1b)):
            a("v_add_u32 v%d, s%d, v%d" % (vC + k, sSLOT, src))
        L = Lds(a)
        f1 = lambda kk: F + 16 * kk

        def g1_reads(kk):
            out = []
            for tt in range(2):
                for h in range(2):
                    r = f1(kk) + 4 * tt + 2 * h
                    out.append(("ds_read_b64_tr_b16 %s, v%d offset:%d" % (vr(r, 2), vC + tt, kk * 4096 + h * 1024), rng(r, 2)))
                r = f1(kk) + 8 + 4 * tt
                out.append(("ds_read_b128 %s, v%d offset:%d" % (vr(r, 4), vC + 2, kk * 4096 + tt * 1024), rng(r, 4)))
            return out

        for x in g1_reads(0) + g1_reads(1):
            L.op(*x)
        for kk in range(4):
            pend = g1_reads(kk + 2) if kk < 2 else []
            for tt, dd in ((0, 0), (1, 0), (0, 1), (1, 1)):
                L.need(list(rng(f1(kk) + 4 * tt, 4)) + list(rng(f1(kk) + 8 + 4 * dd, 4)))
                c = acc1 + 4 * (2 * dd + tt)
                a("v_mfma_f32_16x16x32_bf16 %s, %s, %s, %s" % (vr(c, 4), vr(f1(kk) + 4 * tt, 4), vr(f1(kk) + 8 + 4 * dd, 4), vr(c, 4)))
                for _ in range(2):
                    if pend:
                        L.op(*pend.pop(0))
            assert not pend
        self.advance_slot()
        a("s_add_u32 s%d, s%d, 1" % (sT3, sT3))
        a("s_cmp_lt_u32 s%d, 16" % sT3)
        a("s_cbranch_scc1 L_g1_loop")
        self.stamp(3)
        bb = F
        for tt in range(2):
            for h in range(2):
                a("v_lshlrev_b32 v%d, 16, v%d" % (bb + 4 * tt + 2 * h, vB1 + 2 * tt + h))
                a("v_and_b32 v%d, 0xffff0000, v%d" % (bb + 4 * tt + 2 * h + 1, vB1 + 2 * tt + h))
        a("v_lshlrev_b32 v%d, 4, v0" % (F + 8))
        a("s_and_b32 s%d, s%d, 1" % (sT0, w))
        a("s_lshl1_add_u32 s%d, s%d, s%d" % (sT0, sFT64, sT0))
        a("s_mul_i32 s%d, s%d, 5120" % (sT0, sT0))
        a("s_add_u32 s%d, s%d, %d" % (sT0, sT0, UF))
        a("v_add_u32 v%d, s%d, v%d" % (F + 8, sT0, F + 8))
        z = F + 16
        a("v_mov_b32 v%d, 0xc0135761" % (F + 9))
        for dd in range(2):
            c = acc1 + 8 * dd
            if self.mimic:
                for r in range(0, 8, 2):
                    round2(c + r, c + r + 1)
            for r in range(8):
                a("v_add_f32 v%d, v%d, v%d" % (c + r, c + r, bb + r))
            if self.mimic:
                for r in range(0, 8, 2):
                    round2(c + r, c + r + 1)
            for r in range(8):
                a("v_mul_f32 v%d, v%d, v%d" % (z + r, c + r, c + r))
            for r in range(8):
                a("v_fmamk_f32 v%d, v%d, 0xbdd2d3e8, v%d" % (z + r, z + r, F + 9))
            for r in range(8):
                a("v_mul_f32 v%d, v%d, v%d" % (z + r, z + r, c + r))
            for r in range(8):
                a("v_exp_f32 v%d, v%d" % (z + r, z + r))
            for r in range(8):
                a("v_add_f32 v%d, 1.0, v%d" % (z + r, z + r))
            for r in range(8):
                a("v_rcp_f32 v%d, v%d" % (z + r, z + r))
            for r in range(8):
                a("v_mul_f32 v%d, v%d, v%d" % (z + r, z + r, c + r))
            ur = F + 24 + 4 * dd
            for r in range(4):
                a("v_cvt_pk_bf16_f32 v%d, v%d, v%d" % (ur + r, z + 2 * r, z + 2 * r + 1))
            a("s_and_b32 s%d, s%d, 2" % (sT0, w))
            a("s_lshl2_add_u32 s%d, s%d, s%d" % (sT0, sDT64, sT0))
            a("s_add_u32 s%d, s%d, %d" % (sT0, sT0, dd))
            a("s_mul_i32 s%d, s%d, 205" % (sT1, sT0))
            a("s_lshr_b32 s%d, s%d, 10" % (sT1, sT1))
            a("s_mul_i32 s%d, s%d, %d" % (sT1, sT1, 245760 - 5120))
            a("s_lshl_b32 s%d, s%d, 10" % (sT0, sT0))
            a("s_add_u32 s%d, s%d, s%d" % (sT0, sT0, sT1))
            a("buffer_store_dwordx4 %s, v%d, %s, s%d offen sc1" % (vr(ur, 4), F + 8, srd(sWS), sT0))
        a("s_branch L_qkv_go")
        a.label("L_g1_idle")
        a("s_barrier")
        a("s_add_u32 s%d, s%d, 1" % (sT3, sT3))
        a("s_cmp_lt_u32 s%d, 16" % sT3)
        a("s_cbranch_scc1 L_g1_idle")
        a("s_branch L_qkv_go")

    def build(self):
        self.prologue()
        self.compute()
        self.loader()
        self.a.label("L_end")
        self.a("s_endpgm")
        body = self.a.finish()
        ref = open(os.path.join(os.path.dirname(os.path.abspath(__file__)), "..", "cdna_kernels", NAME + ".s.ref")).read()
        head = "".join(l + "\n" for l in ref.splitlines() if l.startswith(";") and "@launch" not in l and "Override" not in l and "grid=ceil" not in l)
        return (head + "; @launch grid=(256,1,1) block=(512,1,1) lds=%d\n" % LDS_BYTES
                + '.amdgcn_target "amdgcn-amd-amdhsa--gfx950"\n.text\n.globl %s_kernel\n.p2align 8\n.type %s_kernel,@function\n%s_kernel:\n' % (NAME, NAME, NAME)
                + body
                + '.section .rodata,"a"\n.p2align 6\n.amdhsa_kernel %s_kernel\n' % NAME
                + "  .amdhsa_next_free_vgpr 256\n  .amdhsa_next_free_sgpr 96\n  .amdhsa_accum_offset 256\n"
                + "  .amdhsa_group_segment_fixed_size 0\n  .amdhsa_kernarg_size 96\n  .amdhsa_user_sgpr_count 2\n"
                + "  .amdhsa_user_sgpr_kernarg_segment_ptr 1\n  .amdhsa_system_sgpr_workgroup_id_x 1\n.end_amdhsa_kernel\n")


if __name__ == "__main__":
    import argparse
    ap = argparse.ArgumentParser()
    ap.add_argument("-o", default=None)
    ap.add_argument("-a", type=int, default=6)
    ap.add_argument("--dh", type=int, default=2)
    ap.add_argument("--du", type=int, default=2)
    ap.add_argument("--stamps", action="store_true")
    ap.add_argument("--nomimic", action="store_true")
    args = ap.parse_args()
    g = Gen(args.a, args.dh, args.du, args.stamps, not args.nomimic)
    txt = g.build()
    out = args.o or os.path.join(os.path.dirname(os.path.abspath(__file__)), "..", "cdna_kernels", NAME + ".s")
    open(out, "w").write(txt)
    print("wrote", out, "nops inserted:", g.a.nops, file=sys.stderr)
    st, issue, waits = g.sched
    for b in range(-1, len(st)):
        print(b, st[b] if b >= 0 else "-", waits.get(b), issue[b], file=sys.stderr)
```
